```python
import torch

def _softmax(x, axis=-1):
    return torch.softmax(x, dim=axis)
def _gelu(x):
    return torch.nn.functional.gelu(x, approximate="tanh")
def _silu(x):
    return torch.nn.functional.silu(x)
def _sigmoid(x):
    return torch.sigmoid(x)
def _layernorm(x, axis=-1, eps=1e-5):
    m = x.mean(dim=axis, keepdim=True)
    v = x.var(dim=axis, keepdim=True, unbiased=False)
    return (x - m) / torch.sqrt(v + eps)
def _scatter_add(tgt, idx, src, axis=0):
    return tgt.clone().index_add_(axis, idx, src)
def _segment_sum(src, seg, n):
    out = torch.zeros((n,) + src.shape[1:], dtype=src.dtype)
    return out.index_add_(0, seg, src)
def _pad(x, pw):
    flat = tuple(v for pair in reversed(pw) for v in pair)
    return torch.nn.functional.pad(x, flat)

kernel_name = 'standalone__gqa_softmax__near_ridge'

def setup_inputs():

    _w = (lambda a: (lambda t: t.to(torch.bfloat16) if t.is_floating_point() else t)(torch.as_tensor(a)))
    B, Hq, Hkv, Sq, Sk, D = 8, 32, 16, 208, 2048, 128
    return {
        "q": _w((lambda *s: torch.randn(*s, dtype=torch.bfloat16) * 0.8)(B, Hq, Sq, D)),
        "k": _w((lambda *s: torch.randn(*s, dtype=torch.bfloat16) * 0.8)(B, Hkv, Sk, D)),
        "v": _w((lambda *s: torch.randn(*s, dtype=torch.bfloat16) * 0.05)(B, Hkv, Sk, D)),
    }

def reference(q, k, v):
    B, Hq, Sq, D = q.shape
    Hkv = k.shape[1]
    rep = Hq // Hkv
    k = (lambda x, n, axis: torch.repeat_interleave(x, n, dim=axis))(k, rep, axis=1)
    v = (lambda x, n, axis: torch.repeat_interleave(x, n, dim=axis))(v, rep, axis=1)
    scale = D ** -0.5
    scores = torch.einsum("bhqd,bhkd->bhqk", q, k) * scale
    p = _softmax(scores, axis=-1)
    return torch.einsum("bhqk,bhkd->bhqd", p, v)
```

```python
import re
TRANS = ("v_exp_f32","v_rcp_f32","v_log_f32","v_rsq_f32","v_sqrt_f32")
def regs_of(tok):
    tok = tok.strip()
    tok = tok.lstrip('-').strip('|')
    m = re.fullmatch(r'([vas])(\d+)', tok)
    if m: return [(m.group(1), int(m.group(2)))]
    m = re.fullmatch(r'([vas])\[(\d+):(\d+)\]', tok)
    if m: return [(m.group(1), i) for i in range(int(m.group(2)), int(m.group(3))+1)]
    if tok == 'vcc': return [('s',106),('s',107)]
    if tok == 'm0': return [('s',124)]
    if tok == 'exec': return [('s',126),('s',127)]
    return []
class I:
    def __init__(self, text, st=None, tag=None):
        self.text = text; self.st = st; self.tag = tag
        t = text.split(';')[0].strip()
        self.label = t.endswith(':') or t.startswith('.') or t == ''
        self.R=set(); self.W=set(); self.A=set(); self.C=[]; self.D=[]
        self.kind='label'; self.op=''
        if self.label: return
        sp = t.split(None,1); op = sp[0]; self.op = op
        rest = sp[1] if len(sp)>1 else ''
        ops = [o.strip() for o in rest.split(',')] if rest else []
        if ops:
            last = ops[-1].split()
            mods = last[1:] if last else []
            ops[-1] = last[0] if last else ''
        else: mods=[]
        self.mods = mods
        rr = [regs_of(o) for o in ops]
        flat = lambda l: set(x for y in l for x in y)
        if op.startswith('v_mfma') or op.startswith('v_smfmac'):
            self.kind='mfma'; self.D=rr[0]; self.W=set(rr[0]); self.A=flat(rr[1:3]); self.C=rr[3]; self.R=self.A|set(rr[3])
        elif op.startswith('v_permlane'):
            self.kind='valu'; self.R=flat(rr); self.W=flat(rr)
        elif op.startswith('v_'):
            self.kind='trans' if op in TRANS else 'valu'
            self.W=set(rr[0]); self.R=flat(rr[1:])
            if op.startswith('v_cndmask') and len(ops)==3: self.R |= {('s',106),('s',107)}
            if op.startswith('v_fmac') or op.startswith('v_pk_fmac'): self.R |= self.W
        elif op.startswith('ds_read'):
            self.kind='ds'; self.W=set(rr[0]); self.R=flat(rr[1:])
        elif op.startswith('ds_'):
            self.kind='ds'; self.R=flat(rr)
        elif op.startswith('buffer_load'):
            self.kind='vmem'
            if 'lds' in mods: self.R=flat(rr)|{('s',124)}; self.tag = self.tag or 'dma'
            else: self.W=set(rr[0]); self.R=flat(rr[1:])
        elif op.startswith('buffer_store'):
            self.kind='vmem'; self.R=flat(rr); self.data=set(rr[0])
        elif op in ('s_waitcnt','s_barrier','s_nop','s_endpgm','s_setprio') or op.startswith('s_cbranch') or op=='s_branch':
            self.kind='sctl'
        elif op.startswith('s_cmp') or op.startswith('s_bitcmp'):
            self.kind='salu'; self.R=flat(rr)
        elif op.startswith('s_load') or op.startswith('s_mem'):
            self.kind='smem'; self.W=set(rr[0]); self.R=flat(rr[1:])
        elif op.startswith('s_'):
            self.kind='salu'; self.W=set(rr[0]); self.R=flat(rr[1:])
        else:
            raise ValueError(text)
    def ws(self):
        if self.label: return 0
        if self.op=='s_nop': return int(self.text.split()[1],0)+1
        return 1
    def __repr__(self): return self.text
def isv(k): return k in ('valu','trans')
def need(p, c):
    n = 0
    vW = {r for r in p.W if r[0]!='s'}; sW = {r for r in p.W if r[0]=='s'}
    if isv(p.kind):
        if c.kind=='mfma' and vW & c.R: n=max(n,2)
        if p.kind=='trans' and isv(c.kind) and vW & c.R: n=max(n,1)
        if c.op.startswith('v_permlane') and vW & c.R: n=max(n,2)
        if c.op.startswith('v_read') and vW & c.R: n=max(n,1)
        if 'dpp' in c.op and vW & c.R: n=max(n,2)
        if 'sdwa' in p.op and isv(c.kind) and vW & (c.R|c.W): n=max(n,1)
        if sW:
            if isv(c.kind) and sW & c.R: n=max(n,2)
            if c.kind=='vmem' and sW & c.R: n=max(n,5)
            if c.kind=='salu' and sW & c.R: n=max(n,1)
    if p.kind=='mfma':
        if c.kind=='mfma':
            if p.W & c.A: n=max(n,8)
            if p.W & set(c.C) and list(c.C)!=list(p.D): n=max(n,6)
            if p.W & c.W and list(c.C)!=list(p.D): n=max(n,8)
        elif c.kind in ('valu','trans','ds','vmem'):
            if p.W & (c.R|c.W): n=max(n,8)
            if isv(c.kind) and set(p.C) & c.W: n=max(n,3)
            if isv(c.kind) and p.A & c.W: n=max(n,1)
    if p.kind=='salu' and ('s',124) in p.W and c.tag=='dma': n=max(n,1)
    if p.op.startswith('buffer_store') and ('x4' in p.op or 'x3' in p.op) and p.data & c.W: n=max(n,2)
    return n
def fix_hazards(seq, ctx=(), strict=False, name=''):
    hist = list(ctx)[-16:]; out=[]; added=0
    for c in seq:
        if not c.label:
            d=0; req=0
            for p in reversed(hist):
                if d>=12: break
                if not p.label:
                    k = need(p,c)
                    if k-d > req:
                        req = k-d; why=(p,c)
                d += p.ws()
            if req>0:
                if strict: print(f"[{name}] hazard: {why[0]} -> {why[1]} needs {req} more")
                nop = I(f"s_nop {req-1}"); out.append(nop); hist.append(nop); added+=1
        out.append(c); hist.append(c)
    return out, added
def lgkm_state(seq, q=None):
    q = list(q or [])
    for c in seq:
        if c.kind in('ds','smem'): q.append(c)
        elif c.op=='s_waitcnt':
            m = re.search(r'lgkmcnt\((\d+)\)', c.text)
            if m:
                n=int(m.group(1)); q = q[len(q)-n:] if n<len(q) and n>0 else ([] if n==0 else q)
    return q
def check_lgkm(seq, q=None, name=''):
    q = list(q or []); bad=0
    for c in seq:
        if c.label: continue
        for o in q:
            if o.W & (c.R|c.W):
                print(f"[{name}] lgkm violation: {o} -> {c}"); bad+=1
        q = lgkm_state([c], q)
    return q, bad
def auto_lgkm(seq, q=None, hoist=True):
    out=[]; q=list(q or [])
    for c in seq:
        if not c.label:
            idx=-1
            for k,o in enumerate(q):
                if o.W & (c.R|c.W): idx=k
            if idx>=0:
                pos=len(out); n=len(q)-1-idx
                if hoist and c.kind=='mfma':
                    p=len(out); m=n
                    while p>0 and out[p-1].kind!='mfma' and not out[p-1].label and out[p-1] is not q[idx] and out[p-1].op!='s_barrier':
                        if out[p-1].kind in('ds','smem'): m-=1
                        p-=1
                    if p>0 and out[p-1].kind=='mfma': pos=p; n=m
                out.insert(pos, I(f"s_waitcnt lgkmcnt({min(n,15)})"))
                q = q[idx+1:]
        out.append(c); q = lgkm_state([c], q)
    return out, q
def emit(seq):
    return "\n".join((c.text if c.label else "    "+c.text) for c in seq)+"\n"
```

```python
import sys, math, struct
from asmlib import *

NAME = "standalone__gqa_softmax__near_ridge"
CFG = dict(timing=False, barpos=2, expB0=129, expB1=234, thr=30)
for a in sys.argv[2:]:
    k,v = a.split('='); CFG[k] = eval(v)

vKr, vVr, vKd, vVd = 1,2,3,4
L = lambda i: 5+i
T0 = 12
Q = lambda i,s: 16+16*i+4*s
S = lambda par,i: 128+28*par+4*i
Pb = lambda i: 184+6*i if i<6 else 218
C = lambda i: 224+4*i
T1 = 252
O = lambda i,t: 32*i+4*t
FK = lambda s: 224+4*s
FV = lambda t: 240+4*t
def v(a,n=1): return f"v{a}" if n==1 else f"v[{a}:{a+n-1}]"
def a_(a,n=1): return f"a{a}" if n==1 else f"a[{a}:{a+n-1}]"
sQ,sK,sV,sO = 4,8,12,16
sCnt,sKg,sVg,sKl,sVl,sXA,sXB,sW,sG,sH,sFB = 20,21,22,23,24,25,26,27,28,29,30
sT = 32
sQt = 40
VB = 65536
MF = "v_mfma_f32_16x16x32_bf16"
def f2u(x): return struct.unpack('<I', struct.pack('<f', x))[0]

def qk(par,s,i,czero=False):
    c = (("0" if czero else v(C(i),4)) if s==0 else v(S(par,i),4))
    return f"{MF} {v(S(par,i),4)}, {a_(FK(s),4)}, {v(Q(i,s),4)}, {c}"
def ptuple(kind,i): return Pb(i) if kind=='A' else Pb(i)+2
def pslot(kind,par,i): return Pb(i)+2 if par==1 else (Pb(i) if kind=='A' else Pb(i)+4)
def pv(stagekind,t,i):
    return f"{MF} {a_(O(i,t),4)}, {a_(FV(t&3),4)}, {v(ptuple(stagekind,i),4)}, {a_(O(i,t),4)}"
def kread(par,s): return f"ds_read_b128 {a_(FK(s),4)}, {v(vKr)} offset:{par*4096+s*512}"
def vread(stagekind,t,par):
    half = par if stagekind=='A' else 1-par
    return f"ds_read_b64_tr_b16 {a_(FV(t&3)+2*half,2)}, {v(vVr)} offset:{par*4096+t*256}"
def dma(which,n):
    sh,kb = n>>1, n&1
    vo,srd,so = (vKd,sK,sKg) if which=='K' else (vVd,sV,sVg)
    return f"buffer_load_dwordx4 {v(vo)}, s[{srd}:{srd+3}], s{so} offen offset:{kb*2048+sh*128} lds"
def m0set(which,sh):
    sl = sKl if which=='K' else sVl
    return f"s_mov_b32 m0, s{sl}" if sh==0 else f"s_add_u32 m0, s{sl}, 896"
def dma_adv(which,xr):
    sl,so,srd = (sKl,sKg,sK) if which=='K' else (sVl,sVg,sV)
    return [f"s_add_u32 s{so}, s{so}, 0x4000", f"s_xor_b32 s{sl}, s{sl}, {xr}", f"s_andn2_b32 s{srd+2}, 0x80000, s{so}"]

N=208
mf=[None]*N; sc=[[] for _ in range(N)]; mem=[[] for _ in range(N)]; va=[[] for _ in range(N)]
used=[0]*N; cap=[2]*N
info={}
other={'A':'B','B':'A'}
base={'A':0,'B':104}
for kind in 'AB':
    nq,npv = (6,7) if kind=='A' else (7,6)
    p=base[kind]; ph=[]
    for half in range(2):
        ph.append(p)
        for s in range(4):
            for i in range(nq):
                mf[p]=I(qk(half,s,i),st=1); info[('qk',kind,half,s,i)]=p; p+=1
        ph.append(p)
        for tt in range(4):
            for i in range(npv):
                mf[p]=I(pv(other[kind],half*4+tt,i),st=0); info[('pv',other[kind],half*4+tt,i)]=p; p+=1
    ph.append(p); info[('ph',kind)]=ph
ntile={'A':6,'B':7}
groupstart=set()
for k,p in info.items():
    if k[0]=='qk' and k[4]==0: groupstart.add((p-1)%N)
    if k[0]=='pv' and k[3]==0: groupstart.add((p-1)%N)
def stg(kind,pos):
    return 1 if base[kind] <= pos < base[kind]+104 else 0
last=[103,207]
for p in last:
    cap[p]=0
    sc[p-1].append(I(f"s_sub_u32 s{sCnt}, s{sCnt}, 1",st='cnt'))
exppos={}
seqB=[(par,i,r) for par in range(2) for i in range(7) for r in range(4)]
seqA=[(par,i,r) for par in range(2) for i in range(6) for r in range(4)]
b0,b1=CFG['expB0'],CFG['expB1']
def place(pos,units,lst,ins):
    lst[pos%N].append(ins); used[pos%N]+=units
def free(pos,units): return used[pos%N]+units<=cap[pos%N]
prev=-1
for n,(par,i,r) in enumerate(seqB):
    pos=max(b0+int(n*(b1-b0)/56), prev+1, info[('qk','B',par,3,i)]+4)
    while not free(pos,2): pos+=1
    prev=pos; exppos[('B',par,i,r)]=pos
    place(pos,2,va,I(f"v_exp_f32 {v(S(par,i)+r)}, {v(S(par,i)+r)}",st=stg('B',pos)))
prev-=N
for n,(par,i,r) in enumerate(seqA):
    pos=max(b1-N+int(n*(b0+N-b1)/48), prev+1, info[('qk','A',par,3,i)]+4)
    while not free(pos,2): pos+=1
    prev=pos; exppos[('A',par,i,r)]=pos
    place(pos,2,va,I(f"v_exp_f32 {v(S(par,i)+r)}, {v(S(par,i)+r)}",st=stg('A',pos)))
def spread(lo,hi,items,lst=mem,units=1):
    cand=[p for p in range(lo,hi+1) if free(p,units) and not mem[p%N]]
    assert len(cand)>=len(items),(lo,hi,len(cand),len(items))
    res=[]
    for n,it in enumerate(items):
        p=cand[int((n+0.5)*len(cand)/len(items))]
        place(p,units,lst,it); res.append(p)
    return res
def sput(pos,ins,fwd=True):
    p=pos
    while sc[p%N] or (p%N) in groupstart or (p%N) in last: p+= 1 if fwd else -1
    sc[p%N].append(ins); return p
for kind in 'AB':
    ph=info[('ph',kind)]; sk=other[kind]
    xs,xo = (sXA,sXB) if kind=='A' else (sXB,sXA)
    bar=ph[3]+CFG['barpos']
    sc[bar].append(I("s_waitcnt vmcnt(16) lgkmcnt(0)",st=1,tag='barwait')); sc[bar+1].append(I("s_barrier",st=1))
    spread(ph[0],ph[1]-6,[I(vread(sk,t,par),st=0) for t in range(4) for par in range(2)])
    p3=spread(ph[2],ph[3]-7,[I(vread(sk,t,par),st=0) for t in range(4,8) for par in range(2)])
    items=[]
    for n in range(4): items += [I(kread(1,n),st=1), I(dma('V',n),st=1)]
    pp=spread(ph[1]+1,ph[2]-3,items)
    sput(pp[1]-1,I(m0set('V',0),st=1),False); q=sput(pp[5]-1,I(m0set('V',1),st=1),False); assert q>pp[3]
    q=pp[7]+1
    for t in dma_adv('V',f"s{xo}"): q=sput(q,I(t,st=1))+1
    spread(pp[7]+1,pp[7]+8,[I(f"v_xor_b32 {v(vKr)}, s{xo}, {v(vKr)}",st=1)],lst=va)
    items=[]
    for n in range(4): items += [I(kread(0,n),st=2), I(dma('K',n),st=1)]
    pp=spread(bar+2,ph[4]-4,items)
    q=sput(pp[1]-1,I(m0set('K',0),st=1),False); assert q>bar+1
    q=sput(pp[5]-1,I(m0set('K',1),st=1),False); assert q>pp[3]
    q=pp[7]+1
    adv=dma_adv('K',f"s{xo}")
    for t in adv:
        x=I(t,st=1); q=sput(q,x)
        if q>=ph[4]: x.st='adv'
        q+=1
    spread(p3[-1]+1,p3[-1]+8,[I(f"v_xor_b32 {v(vVr)}, s{xs}, {v(vVr)}",st=0)],lst=va)
total=sum(used)+104+52
over=total-sum(cap)
cand=[p for p in range(N) if cap[p]==2 and used[p]<2]
for n in range(max(over,0)+CFG.get('xover',0)):
    cap[cand[int((n+0.5)*len(cand)/(over+CFG.get('xover',0)))]]=3
todo=[]
for kind in 'AB':
    for par in range(2):
        for i in range(ntile[kind]):
            nxt=info[('pv',kind,0,i)];
            if nxt<base[kind]: nxt+=N
            for k in range(2):
                rel=max(exppos[(kind,par,i,2*k)],exppos[(kind,par,i,2*k+1)])+1
                if par==1 and i<6: rel=max(rel,info[('pv',other[kind],7,i)]+1)
                todo.append((0,rel,nxt-2,kind,f"v_cvt_pk_bf16_f32 {v(pslot(kind,par,i)+k)}, {v(S(par,i)+2*k)}, {v(S(par,i)+2*k+1)}"))
            if i<6:
                dl=info[('qk',other[kind],par,0,i)]
                if dl<base[kind]: dl+=N
            else: dl=base[kind]+200
            for r in range(4):
                todo.append((1,exppos[(kind,par,i,r)]+1,dl-1,kind,f"v_add_f32 {v(L(i))}, {v(S(par,i)+r)}, {v(L(i))}"))
novf=0
for pri,rel,dl,kind,txt in sorted(todo):
    pos=rel
    while pos<=dl and not free(pos,1): pos+=1
    if pos>dl:
        pos=min((p for p in range(rel,dl+1) if cap[p%N]>0), key=lambda p:(used[p%N],-p)); novf+=1
    place(pos,1,va,I(txt,st=stg(kind,pos)))
print("units",sum(used),"over",over,"forced overflow",novf,"hist",[used.count(k) for k in range(5)],file=sys.stderr)

def period(kind,keep=lambda st:True,frm=0):
    out=[]
    for p in range(base[kind]+frm,base[kind]+104):
        for ins in [mf[p]]+sc[p]+mem[p]+va[p]:
            if keep(ins.st): out.append(ins)
    return out

def ins(txt): return [I(t.strip()) for t in txt.strip().split('\n') if t.strip()]
def stamp(n):
    if not CFG['timing']: return []
    return ins(f"s_memtime s[{60+2*n}:{61+2*n}]")
cscale = math.log2(math.e)/math.sqrt(128.0)
pro=[]
pro+=ins(f"""
s_cmp_ge_u32 s2, 256
s_cbranch_scc1 L_end
s_load_dwordx4 s[{sT}:{sT+3}], s[0:1], 0
s_load_dwordx4 s[{sT+4}:{sT+7}], s[0:1], 16
""")
pro+=stamp(0)
pro+=ins(f"""
v_lshrrev_b32 v12, 6, v0
v_and_b32 v0, 63, v0
s_lshr_b32 s48, s2, 4
v_readfirstlane_b32 s{sW}, v12
s_lshl_b32 s48, s48, 3
s_and_b32 s49, s2, 7
s_add_u32 s48, s48, s49
s_bfe_u32 s49, s2, 0x10003
s_lshl_b32 s50, s48, 1
s_add_u32 s50, s50, s49
s_mul_i32 s50, s50, 53248
s_lshr_b32 s49, s48, 13
s_lshl_b32 s48, s48, 19
s_lshr_b32 s{sG}, s{sW}, 1
s_and_b32 s{sH}, s{sW}, 1
s_mov_b32 s{sFB}, 0
s_mov_b32 s{sQ+2}, 53248
s_mov_b32 s{sQ+3}, 0x00020000
s_mov_b32 s{sK+3}, 0x00020000
s_mov_b32 s{sV+3}, 0x00020000
s_mov_b32 s{sO+2}, 53248
s_mov_b32 s{sO+3}, 0x00020000
v_lshrrev_b32 v12, 2, v0
v_and_b32 v12, 7, v12
v_lshrrev_b32 v13, 3, v0
v_and_b32 v13, 2, v13
v_and_b32 v14, 3, v0
v_xor_b32 v13, v13, v14
v_lshlrev_b32 v13, 4, v13
v_lshl_add_u32 v{vKd}, v12, 8, v13
v_lshrrev_b32 v12, 5, v0
v_lshl_add_u32 v{vKd}, v12, 6, v{vKd}
v_lshrrev_b32 v12, 1, v0
v_and_b32 v12, 7, v12
v_and_b32 v13, 1, v0
v_lshlrev_b32 v13, 4, v13
v_lshl_add_u32 v{vVd}, v12, 8, v13
v_lshrrev_b32 v12, 4, v0
v_lshl_add_u32 v{vVd}, v12, 5, v{vVd}
v_and_b32 v13, 15, v0
v_lshlrev_b32 v13, 8, v13
v_lshl_add_u32 v{T1}, v12, 4, v13
s_waitcnt lgkmcnt(0)
s_add_u32 s{sQ}, s{sT}, s50
s_addc_u32 s{sQ+1}, s{sT+1}, 0
s_add_u32 s{sK}, s{sT+2}, s48
s_addc_u32 s{sK+1}, s{sT+3}, s49
s_add_u32 s{sV}, s{sT+4}, s48
s_addc_u32 s{sV+1}, s{sT+5}, s49
s_add_u32 s{sO}, s{sT+6}, s50
s_addc_u32 s{sO+1}, s{sT+7}, 0
s_mul_i32 s48, s{sG}, 6
s_mul_i32 s49, s{sH}, 3
s_add_u32 s50, s48, s49
s_lshl_b32 s{sQt}, s50, 12
s_add_u32 s{sQt+1}, s{sQt}, 0x1000
s_add_u32 s{sQt+2}, s{sQt}, 0x2000
s_add_u32 s50, s48, 3
s_sub_u32 s50, s50, s49
s_lshl_b32 s{sQt+3}, s50, 12
s_add_u32 s{sQt+4}, s{sQt+3}, 0x1000
s_add_u32 s{sQt+5}, s{sQt+3}, 0x2000
s_mov_b32 s{sQt+6}, 0xc000
s_lshl_b32 s{sXA}, 0x4000, s{sG}
s_lshr_b32 s{sXB}, 0x8000, s{sG}
L_restart:
s_lshl_b32 s48, s{sH}, 1
s_add_u32 s48, s48, s{sG}
s_lshl_b32 s{sKg}, s48, 12
s_mov_b32 s{sVg}, s{sKg}
s_mov_b32 s{sKl}, s{sKg}
s_add_u32 s{sVl}, s{sKg}, {VB}
s_mov_b32 s{sK+2}, 0x80000
s_mov_b32 s{sV+2}, 0x80000
s_mov_b32 s{sCnt}, 30
""")
def dma_stage(which,j):
    o=[]
    for n in range(4):
        if n%2==0: o.append(I(m0set(which,n>>1)))
        o.append(I(dma(which,n)))
    o+=[I(t) for t in dma_adv(which, "0x4000" if j%2==0 else "0x8000")]
    return o
pro+=dma_stage('K',0)
pro+=ins(f"s_cmp_lg_u32 s{sFB}, 0\ns_cbranch_scc1 L_noq")
for i in range(7):
    for s in range(4):
        pro.append(I(f"buffer_load_dwordx4 {v(Q(i,s),4)}, {v(T1)}, s[{sQ}:{sQ+3}], s{sQt+i} offen offset:{s*64}"))
pro+=ins("L_noq:")
for w,j in [('K',1),('V',0),('K',2),('V',1),('K',3)]: pro+=dma_stage(w,j)
pro+=ins(f"""
v_and_b32 v12, 7, v0
v_lshlrev_b32 v12, 6, v12
v_bfe_u32 v13, v0, 3, 1
v_lshl_add_u32 v12, v13, 11, v12
v_lshrrev_b32 v13, 1, v0
v_and_b32 v13, 2, v13
v_lshrrev_b32 v14, 4, v0
v_xor_b32 v13, v13, v14
v_lshl_add_u32 v12, v13, 4, v12
s_lshl_b32 s48, s{sH}, 13
v_add_u32 v{vKr}, s48, v12
v_lshrrev_b32 v12, 5, v0
v_and_b32 v13, 31, v0
v_lshlrev_b32 v13, 3, v13
v_lshl_add_u32 v12, v12, 11, v13
s_add_u32 s48, s48, {VB}
v_add_u32 v{vVr}, s48, v12
""")
for r in range(224): pro.append(I(f"v_accvgpr_write_b32 a{r}, 0"))
for i in range(7): pro.append(I(f"v_mov_b32 {v(L(i))}, 0"))
pro+=ins(f"s_cmp_lg_u32 s{sFB}, 0\ns_cbranch_scc1 L_noscale\ns_mov_b32 s48, {hex(f2u(cscale))}\ns_mov_b32 s49, s48\ns_mov_b32 s50, 0xffff0000")
for i in range(7):
    pro.append(I(f"s_waitcnt vmcnt({20+4*(6-i)})"))
    for r0 in range(0,16,4):
        tmp=[S(0,0)+2*k for k in range(4)]
        for k in range(4):
            r=Q(i,0)+r0+k
            pro.append(I(f"v_lshlrev_b32 {v(tmp[k])}, 16, {v(r)}")); pro.append(I(f"v_and_b32 {v(tmp[k]+1)}, s50, {v(r)}"))
        for k in range(4): pro.append(I(f"v_pk_mul_f32 {v(tmp[k],2)}, {v(tmp[k],2)}, s[48:49]"))
        for k in range(4): pro.append(I(f"v_cvt_pk_bf16_f32 {v(Q(i,0)+r0+k)}, {v(tmp[k])}, {v(tmp[k]+1)}"))
pro+=ins("L_noscale:\ns_waitcnt vmcnt(20)\ns_barrier")
pro+=stamp(1)
for s in range(4): pro.append(I(kread(0,s)))
for i in range(7):
    for s in range(4): pro.append(I(qk(0,s,i,True)))
def lanemax(regs,tmps,op="v_max_f32"):
    o=[]
    for sw in ("v_permlane32_swap_b32","v_permlane16_swap_b32"):
        for r,t in zip(regs,tmps): o.append(I(f"v_mov_b32 {v(t)}, {v(r)}"))
        for r,t in zip(regs,tmps): o.append(I(f"{sw} {v(r)}, {v(t)}"))
        for r,t in zip(regs,tmps): o.append(I(f"{op} {v(r)}, {v(r)}, {v(t)}"))
    return o
pro+=ins(f"s_cmp_lg_u32 s{sFB}, 0\ns_cbranch_scc1 L_nomax\ns_nop 7")
for i in range(7):
    pro.append(I(f"v_max3_f32 {v(C(i))}, {v(S(0,i))}, {v(S(0,i)+1)}, {v(S(0,i)+2)}"))
    pro.append(I(f"v_max_f32 {v(C(i))}, {v(C(i))}, {v(S(0,i)+3)}"))
def setC():
    o=lanemax([C(i) for i in range(7)],[C(i)+1 for i in range(7)])
    for i in range(7):
        for r in (1,2,3,0): o.append(I(f"v_sub_f32 {v(C(i)+r)}, 0, {v(C(i))}"))
    return o
pro+=setC()
pro+=ins("L_nomax:\ns_nop 7")
for i in range(7):
    for r in range(4): pro.append(I(f"v_add_f32 {v(S(0,i)+r)}, {v(S(0,i)+r)}, {v(C(i))}"))
pro+=ins(f"s_cmp_lg_u32 s{sG}, 0\ns_cbranch_scc1 L_pro1")
pro,_=auto_lgkm(pro,hoist=False); pro,_=fix_hazards(pro)

def pre_period(kind):
    ph=info[('ph',kind)]
    o=[]
    for p in range(base[kind],base[kind]+104):
        for x in [mf[p]]+sc[p]+mem[p]+va[p]:
            if x.st in (1,2) and not (p<ph[1] and x.kind=='mfma'): o.append(x)
    o.append(I("s_waitcnt lgkmcnt(0)")); o.append(I("s_nop 7"))
    o,_=auto_lgkm(o,hoist=False); o,_=fix_hazards(o,ctx=pro)
    return o
pro0=pre_period('B'); pro1=pre_period('A')

A=period('A'); B=period('B')
x,q=auto_lgkm(A); x,q=auto_lgkm(B,q); A2,q=auto_lgkm(A,q); qa=q; B2,q=auto_lgkm(B,q); qb=q
A2=A2+[I("s_cbranch_scc1 L_tail0")]
B2=B2+[I("s_cbranch_scc0 L_A")]
A3,n1=fix_hazards(A2,ctx=B2,strict=True,name='A'); B3,n2=fix_hazards(B2,ctx=A3,strict=True,name='B')
_,bad=check_lgkm(A3+B3+A3+B3,name='loop'); assert bad==0
def tail(kind,q,ctx):
    o=[x for x in period(kind) if x.st==0]
    o,_=auto_lgkm(o,q); o,_=fix_hazards(o,ctx=ctx)
    return o
tail0=tail('B',qa,A3); tail1=tail('A',qb,B3)

XR=lambda b: b*1024
ML=131072
FL=ML+4*7*512
ep=[]
ep+=stamp(3)
ep+=ins("s_nop 7")
ep+=lanemax([L(i) for i in range(7)],[S(0,i) for i in range(7)],"v_add_f32")
ep+=ins(f"s_mov_b32 s48, {hex(f2u(2.0**CFG['thr']))}\ns_mov_b64 s[50:51], 0")
for i in range(7):
    ep+=ins(f"v_cmp_nle_f32 vcc, {v(L(i))}, s48" if False else f"v_cmp_nge_f32 vcc, s48, {v(L(i))}\ns_or_b64 s[50:51], s[50:51], vcc")
ep+=ins(f"""
s_or_b32 s50, s50, s51
s_waitcnt vmcnt(0) lgkmcnt(0)
s_barrier
v_lshlrev_b32 v12, 4, v0
s_lshl_b32 s48, s{sW}, 15
v_add_u32 v13, s48, v12
v_lshlrev_b32 v14, 3, v0
s_mul_i32 s48, s{sW}, 3584
s_add_u32 s48, s48, {ML}
v_add_u32 v15, s48, v14
s_lshl_b32 s48, s{sW}, 2
s_add_u32 s48, s48, {FL}
v_mov_b32 v{T1+1}, s48
v_mov_b32 v{T1+2}, s50
ds_write_b32 v{T1+1}, v{T1+2}
""")
for i in range(7):
    ep+=ins(f"v_mov_b32 {v(C(i)+1)}, {v(L(i))}\nds_write_b64 v15, {v(C(i),2)} offset:{i*512}")
for i in range(3,7):
    for t in range(8): ep.append(I(f"ds_write_b128 v13, {a_(O(i,t),4)} offset:{XR((i-3)*8+t)}"))
ep+=ins(f"""
s_xor_b32 s48, s{sW}, 1
s_lshl_b32 s49, s48, 15
v_add_u32 v13, s49, v12
s_mul_i32 s49, s48, 3584
s_add_u32 s49, s49, {ML}
v_add_u32 v15, s49, v14
v_add_u32 v14, {ML}, v14
s_lshl_b32 s49, s{sW}, 11
v_add_u32 v12, s49, v12
v_mov_b32 v{T1+1}, {FL}
s_waitcnt lgkmcnt(0)
s_barrier
ds_read_b128 {v(S(1,0),4)}, v{T1+1}
""")
ML2=S(1,1)
for i in range(3): ep.append(I(f"ds_read_b64 {v(ML2+2*i,2)}, v15 offset:{(i+3)*512}"))
ML6=ML2+6
for w in range(4): ep.append(I(f"ds_read_b64 {v(ML6+2*w,2)}, v14 offset:{w*3584+6*512}"))
ep+=ins(f"""
v_or3_b32 {v(S(1,0))}, {v(S(1,0))}, {v(S(1,0)+1)}, {v(S(1,0)+2)}
v_or_b32 {v(S(1,0))}, {v(S(1,0))}, {v(S(1,0)+3)}
v_readfirstlane_b32 s48, {v(S(1,0))}
s_cmp_eq_u32 s48, 0
s_cselect_b32 s48, 1, s{sFB}
s_cmp_eq_u32 s48, 0
s_cbranch_scc1 L_fallback
""")
XB=16
for b in range(24): ep.append(I(f"ds_read_b128 {v(XB+4*b,4)}, v13 offset:{XR(b)}"))
FA=184
for i in range(3):
    c2,l2=ML2+2*i,ML2+2*i+1; fa,fb=FA+4*i,FA+4*i+2
    ep+=ins(f"""
v_min_f32 v{T1+1}, {v(C(i))}, {v(c2)}
v_sub_f32 {v(fa)}, v{T1+1}, {v(C(i))}
v_sub_f32 {v(fb)}, v{T1+1}, {v(c2)}
v_exp_f32 {v(fa)}, {v(fa)}
v_exp_f32 {v(fb)}, {v(fb)}
v_mul_f32 v{T1+1}, {v(fa)}, {v(L(i))}
v_fma_f32 v{T1+1}, {v(fb)}, {v(l2)}, v{T1+1}
v_rcp_f32 v{T1+1}, v{T1+1}
v_mul_f32 {v(fa)}, {v(fa)}, v{T1+1}
v_mul_f32 {v(fb)}, {v(fb)}, v{T1+1}
v_mov_b32 {v(fa+1)}, {v(fa)}
v_mov_b32 {v(fb+1)}, {v(fb)}
""")
F6=FA+12
ep+=ins(f"""
v_min3_f32 v{T1+1}, {v(ML6)}, {v(ML6+2)}, {v(ML6+4)}
v_min_f32 v{T1+1}, v{T1+1}, {v(ML6+6)}
""")
for w in range(4): ep+=ins(f"v_sub_f32 {v(F6+2*w)}, v{T1+1}, {v(ML6+2*w)}")
for w in range(4): ep+=ins(f"v_exp_f32 {v(F6+2*w)}, {v(F6+2*w)}")
ep+=ins(f"v_mul_f32 v{T1+1}, {v(F6)}, {v(ML6+1)}")
for w in range(1,4): ep+=ins(f"v_fma_f32 v{T1+1}, {v(F6+2*w)}, {v(ML6+2*w+1)}, v{T1+1}")
ep+=ins(f"v_rcp_f32 v{T1+1}, v{T1+1}")
for w in range(4): ep+=ins(f"v_mul_f32 {v(F6+2*w)}, {v(F6+2*w)}, v{T1+1}\nv_mov_b32 {v(F6+2*w+1)}, {v(F6+2*w)}")
X6=112
for w in range(4):
    for k in range(2): ep.append(I(f"ds_read_b128 {v(X6+8*w+4*k,4)}, v12 offset:{w*32768+XR(24+k)}" if w<2 else f"ds_read_b128 {v(X6+8*w+4*k,4)}, v{T1+2} offset:{(w-2)*32768+XR(24+k)}"))
    if w==0: ep+=ins(f"v_add_u32 v{T1+2}, 0x10000, v12")
ep+=ins(f"""
v_and_b32 v13, 15, v0
v_lshlrev_b32 v13, 8, v13
v_bfe_u32 v14, v0, 4, 1
v_lshl_add_u32 v13, v14, 5, v13
v_lshrrev_b32 v14, 5, v0
v_lshl_add_u32 v13, v14, 4, v13
s_lshl_b32 s48, s{sW}, 6
s_add_u32 s48, s48, 0xc000
""")
TM=208; OUT=144
no=0
for i in range(3):
    fa,fb=FA+4*i,FA+4*i+2
    for tp in range(4):
        tm=TM+8*(no%2); out=OUT+4*(no%8); no+=1
        for r in range(8): ep.append(I(f"v_accvgpr_read_b32 {v(tm+r)}, a{O(i,2*tp)+r}"))
        for r in range(0,8,2): ep.append(I(f"v_pk_mul_f32 {v(tm+r,2)}, {v(tm+r,2)}, {v(fa,2)}"))
        for r in range(0,8,2): ep.append(I(f"v_pk_fma_f32 {v(tm+r,2)}, {v(XB+32*i+8*tp+r,2)}, {v(fb,2)}, {v(tm+r,2)}"))
        for r in range(0,8,2): ep.append(I(f"v_cvt_pk_bf16_f32 {v(out+r//2)}, {v(tm+r)}, {v(tm+r+1)}"))
        ep+=ins(f"v_permlane16_swap_b32 {v(out)}, {v(out+2)}\nv_permlane16_swap_b32 {v(out+1)}, {v(out+3)}")
        ep.append(I(f"buffer_store_dwordx4 {v(out,4)}, v13, s[{sO}:{sO+3}], s{sQt+i} offen offset:{tp*64}"))
tm=TM+8*(no%2); out=OUT+4*(no%8)
for r in range(0,8,2): ep.append(I(f"v_pk_mul_f32 {v(tm+r,2)}, {v(X6+r,2)}, {v(F6,2)}"))
for w in range(1,4):
    for r in range(0,8,2): ep.append(I(f"v_pk_fma_f32 {v(tm+r,2)}, {v(X6+8*w+r,2)}, {v(F6+2*w,2)}, {v(tm+r,2)}"))
for r in range(0,8,2): ep.append(I(f"v_cvt_pk_bf16_f32 {v(out+r//2)}, {v(tm+r)}, {v(tm+r+1)}"))
ep+=ins(f"v_permlane16_swap_b32 {v(out)}, {v(out+2)}\nv_permlane16_swap_b32 {v(out+1)}, {v(out+3)}")
ep.append(I(f"buffer_store_dwordx4 {v(out,4)}, v13, s[{sO}:{sO+3}], s48 offen"))
if CFG['timing']:
    ep+=stamp(4)
    ep+=ins("s_waitcnt vmcnt(0)"); ep+=stamp(5)
    ep+=ins(f"""
s_load_dwordx2 s[52:53], s[0:1], 40
s_waitcnt lgkmcnt(0)
s_mov_b32 s54, 0x100000
s_mov_b32 s55, 0x00020000
s_lshl_b32 s48, s2, 2
s_add_u32 s48, s48, s{sW}
s_lshl_b32 s48, s48, 5
v_mov_b32 v12, s48
""")
    for n in range(6):
        ep+=ins(f"v_mov_b32 v14, s{60+2*n}\nbuffer_store_dword v14, v12, s[52:55], 0 offen offset:{4*n}")
ep+=ins("L_end:\ns_endpgm")
ep,_=auto_lgkm(ep,hoist=False); ep,_=fix_hazards(ep)

fb=ins(f"""
L_fallback:
s_mov_b32 s{sFB}, 1
s_mov_b32 s{sK+2}, 0x80000
s_lshl_b32 s48, s{sH}, 13
s_mov_b32 s50, 0x3000
""")
for i in range(7): fb.append(I(f"v_mov_b32 {v(C(i))}, 0xff800000"))
fb+=ins("L_fbloop:")
for s in range(4): fb.append(I(f"buffer_load_dwordx4 {a_(FK(s),4)}, {v(T1)}, s[{sK}:{sK+3}], s48 offen offset:{s*64}"))
fb+=ins("s_waitcnt vmcnt(0)")
for i in range(7):
    for s in range(4): fb.append(I(qk(0,s,i,True)))
fb+=ins("s_nop 7")
for i in range(7):
    fb.append(I(f"v_max3_f32 {v(C(i))}, {v(S(0,i))}, {v(S(0,i)+1)}, {v(C(i))}"))
    fb.append(I(f"v_max3_f32 {v(C(i))}, {v(S(0,i)+2)}, {v(S(0,i)+3)}, {v(C(i))}"))
fb+=ins(f"""
s_xor_b32 s50, s50, 0x2000
s_add_u32 s48, s48, s50
s_cmp_lt_u32 s48, 0x80000
s_cbranch_scc1 L_fbloop
""")
fb+=setC()
fb+=ins("s_waitcnt lgkmcnt(0)\ns_barrier\ns_branch L_restart")
fb,_=fix_hazards(fb)

hdr=open('cdna_kernels/'+NAME+'.s.ref').read().split('\n')
head=[l for l in hdr if l.startswith(';') and '@launch' not in l]
LDS=FL+64
txt="\n".join(head)+f"\n; @launch grid=(256,1,1) block=(256,1,1) lds={LDS}\n"
txt+=f""".amdgcn_target "amdgcn-amd-amdhsa--gfx950"
.text
.globl {NAME}_kernel
.p2align 8
.type {NAME}_kernel,@function
{NAME}_kernel:
"""
txt+=emit(pro)+emit(pro0)+emit(stamp(2))+"    s_branch L_A\nL_pro1:\n"+emit(pro1)+emit(stamp(2))+"    s_branch L_B\n.p2align 6\nL_A:\n"+emit(A3)+"L_B:\n"+emit(B3)
txt+=emit(tail1)+"    s_branch L_epi\nL_tail0:\n"+emit(tail0)+"L_epi:\n"+emit(ep)+emit(fb)
txt+=f""".section .rodata,"a"
.p2align 6
.amdhsa_kernel {NAME}_kernel
  .amdhsa_next_free_vgpr 512
  .amdhsa_next_free_sgpr 102
  .amdhsa_accum_offset 256
  .amdhsa_group_segment_fixed_size 0
  .amdhsa_kernarg_size 48
  .amdhsa_user_sgpr_count 2
  .amdhsa_user_sgpr_kernarg_segment_ptr 1
  .amdhsa_system_sgpr_workgroup_id_x 1
.end_amdhsa_kernel
"""
open(sys.argv[1],'w').write(txt)
```
